```python
import torch

def _softmax(x, axis=-1):
    return torch.softmax(x, dim=axis)
def _gelu(x):
    return torch.nn.functional.gelu(x, approximate="tanh")
def _silu(x):
    return torch.nn.functional.silu(x)
def _sigmoid(x):
    return torch.sigmoid(x)
def _layernorm(x, axis=-1, eps=1e-5):
    m = x.mean(dim=axis, keepdim=True)
    v = x.var(dim=axis, keepdim=True, unbiased=False)
    return (x - m) / torch.sqrt(v + eps)
def _scatter_add(tgt, idx, src, axis=0):
    return tgt.clone().index_add_(axis, idx, src)
def _segment_sum(src, seg, n):
    out = torch.zeros((n,) + src.shape[1:], dtype=src.dtype)
    return out.index_add_(0, seg, src)
def _pad(x, pw):
    flat = tuple(v for pair in reversed(pw) for v in pair)
    return torch.nn.functional.pad(x, flat)

kernel_name = 'parallel_sum__sliding_block_cached__glu_gated_geglu__decode'

def setup_inputs():

    _w = (lambda a: (lambda t: t.to(torch.bfloat16) if t.is_floating_point() else t)(torch.as_tensor(a)))
    def _A_setup():
        B, Sq, D = 1, 1, 1024
        Hq, Hkv, Sk, Dh = 32, 4, 32768, 128
        assert Hq % Hkv == 0, (Hq, Hkv)
        return {
            "x": _w((lambda *s: torch.randn(*s, dtype=torch.bfloat16) * 0.05)(B, Sq, D)),
            "k_cache": _w((lambda *s: torch.randn(*s, dtype=torch.bfloat16) * 1.6)(B, Hkv, Sk, Dh)),
            "v_cache": _w((lambda *s: torch.randn(*s, dtype=torch.bfloat16) * 0.8)(B, Hkv, Sk, Dh)),
            "wq": _w((lambda *s: torch.randn(*s, dtype=torch.bfloat16) * 1.6)(D, Hq * Dh) * (D ** -0.5)),
            "wo": _w((lambda *s: torch.randn(*s, dtype=torch.bfloat16) * 0.8)(Hq * Dh, D) * ((Hq * Dh) ** -0.5)),
        }
    _A_in = _A_setup()

    def _B_setup():
        B, S, Dm, Df = 1, 1, 1024, 3584
        return {
            "x": _w((lambda *s: torch.randn(*s, dtype=torch.bfloat16) * 0.05)(B, S, Dm)),
            "w_gate": _w((lambda *s: torch.randn(*s, dtype=torch.bfloat16) * 0.8)(Dm, Df) * (Dm ** -0.5)),
            "w_up": _w((lambda *s: torch.randn(*s, dtype=torch.bfloat16) * 0.8)(Dm, Df) * (Dm ** -0.5)),
            "w_down": _w((lambda *s: torch.randn(*s, dtype=torch.bfloat16) * 0.8)(Df, Dm) * (Df ** -0.5)),
        }
    _B_in = _B_setup()

    return {
        "A_x": _A_in["x"],
        "A_k_cache": _A_in["k_cache"],
        "A_v_cache": _A_in["v_cache"],
        "A_wq": _A_in["wq"],
        "A_wo": _A_in["wo"],
        "B_x": _B_in["x"],
        "B_w_gate": _B_in["w_gate"],
        "B_w_up": _B_in["w_up"],
        "B_w_down": _B_in["w_down"],
    }

def reference(A_x, A_k_cache, A_v_cache, A_wq, A_wo, B_x, B_w_gate, B_w_up, B_w_down):
    def _A_ref(x, k_cache, v_cache, wq, wo):
        B, Sq, D = x.shape
        Hq, Dh = 32, 128
        Hkv, Sk = k_cache.shape[1], k_cache.shape[2]
        W = min(4096, max(256, Sk // 4))
        rep = Hq // Hkv
        q = (lambda x, *d: x.permute(*d))((x @ wq).reshape(B, Sq, Hq, Dh), 0, 2, 1, 3)
        k = (lambda x, n, axis: torch.repeat_interleave(x, n, dim=axis))(k_cache[:, :, Sk - W:, :], rep, axis=1)
        v = (lambda x, n, axis: torch.repeat_interleave(x, n, dim=axis))(v_cache[:, :, Sk - W:, :], rep, axis=1)
        scores = torch.einsum("bhqd,bhkd->bhqk", q, k) * (Dh ** -0.5)
        p = _softmax(scores, axis=-1)
        o = torch.einsum("bhqk,bhkd->bhqd", p, v)
        return (lambda x, *d: x.permute(*d))(o, 0, 2, 1, 3).reshape(B, Sq, Hq * Dh) @ wo

    def _B_ref(x, w_gate, w_up, w_down):
        g = torch.einsum("bsd,df->bsf", x, w_gate)
        u = torch.einsum("bsd,df->bsf", x, w_up)
        h = _gelu(g) * u
        return torch.einsum("bsf,fd->bsd", h, w_down)

    x = A_x
    xn = _layernorm(x, axis=-1)
    return x + _A_ref(xn, A_k_cache, A_v_cache, A_wq, A_wo) + _B_ref(xn, B_w_gate, B_w_up, B_w_down)
```

```python
import argparse
NAME='parallel_sum__sliding_block_cached__glu_gated_geglu__decode_kernel'
MiB=1<<20
WS_EPOCH=0x0
WS_QP=0x1000
WS_GU=0x10000
WS_ML=0x30000
WS_AP=0x40000
WS_FP=0x80000
WS_DIAG=0x100000
WS_SIZE=0x200000
L_XRAW=0
L_RED=4096
L_QT=0
L_MX=2560
L_PX=4096
L_T=12288
L_K=16384
L_V=16384+65536
LDS_BYTES=16384+131072
S_X,S_WQ,S_G,S_U,S_WO,S_D,S_K,S_V,S_WS,S_OUT=28,32,36,40,44,48,52,56,60,64
sTAG,sE1,sBUD=68,69,70
sR,sC,sP,sCB,sKT=71,72,73,74,75
sT0,sT1,sT2,sT3=76,77,78,79
sSTAMP=80
LOG2E=0x3fb8aa3b

class G:
    def __init__(s,D=8,diag=False,budget=20000,ntw='nt',a_od_early=0,sleep=1):
        s.o=[]; s.D=D; s.diag=diag; s.budget=budget; s.nt=ntw; s.a_od_early=a_od_early; s.sleep=sleep; s.lab=0
    def a(s,t):
        for l in t.split('\n'):
            s.o.append(l if l.endswith(':') else '  '+l.strip())
    def srd(s,b): return f's[{b}:{b+3}]'
    def v4(s,b): return f'v[{b}:{b+3}]'
    def stamp(s,i):
        if s.diag: s.a(f's_memrealtime s[{sSTAMP+2*i}:{sSTAMP+2*i+1}]')
    def finish(s):
        if s.diag: s.a('s_branch L_diag')
        else: s.a('s_endpgm')
    def exec(s,m):
        lo=m&0xffffffff; hi=m>>32
        if m==(1<<64)-1: s.a('s_mov_b64 exec, -1')
        else: s.a(f's_mov_b32 exec_lo, {hex(lo)}\ns_mov_b32 exec_hi, {hex(hi)}')
    def tagpack(s,regs,vm):
        for r in regs: s.a(f'v_add_u32 v{r}, 0x800, v{r}')
        for r in regs: s.a(f'v_and_or_b32 v{r}, v{r}, v{vm}, s{sTAG}')
    def poll_begin(s,name):
        s.a(f'L_{name}:')
    def poll_end(s,name,regs,vt):
        for r in regs: s.a(f'v_xor_b32 v{r}, s{sTAG}, v{r}')
        rs=list(regs)
        first=True
        while rs:
            if first:
                if len(rs)>=3: s.a(f'v_or3_b32 v{vt}, v{rs[0]}, v{rs[1]}, v{rs[2]}'); rs=rs[3:]
                else: s.a(f'v_or_b32 v{vt}, v{rs[0]}, v{rs[1]}'); rs=rs[2:]
                first=False
            elif len(rs)>=2: s.a(f'v_or3_b32 v{vt}, v{vt}, v{rs[0]}, v{rs[1]}'); rs=rs[2:]
            else: s.a(f'v_or_b32 v{vt}, v{vt}, v{rs[0]}'); rs=rs[1:]
        s.a(f'v_and_b32 v{vt}, 0xfff, v{vt}')
        s.a(f'v_cmp_ne_u32 vcc, 0, v{vt}')
        s.a(f's_cbranch_vccz L_{name}_ok')
        s.a(f's_cmp_eq_u32 s{sBUD}, 0\ns_cbranch_scc1 L_{name}_ok\ns_sub_u32 s{sBUD}, s{sBUD}, 1')
        if s.sleep: s.a(f's_sleep {s.sleep}')
        s.a(f's_branch L_{name}')
        s.a(f'L_{name}_ok:')
    def wave_sum(s,v,sdst):
        for m in ('row_shr:1','row_shr:2','row_shr:4','row_shr:8'):
            s.a(f's_nop 1\nv_add_f32_dpp v{v}, v{v}, v{v} {m} row_mask:0xf bank_mask:0xf bound_ctrl:0')
        s.a(f's_nop 1\nv_add_f32_dpp v{v}, v{v}, v{v} row_bcast:15 row_mask:0xa bank_mask:0xf')
        s.a(f's_nop 1\nv_add_f32_dpp v{v}, v{v}, v{v} row_bcast:31 row_mask:0xc bank_mask:0xf')
        s.a(f's_nop 0\nv_readlane_b32 s{sdst}, v{v}, 63')

    def gen(s):
        a=s.a
        s.o.append(f'; @launch grid=(256,1,1) block=(512,1,1) lds={LDS_BYTES}')
        s.o.append('.amdgcn_target "amdgcn-amd-amdhsa--gfx950"\n.text\n.globl %s\n.p2align 8\n.type %s,@function\n%s:'%(NAME,NAME,NAME))
        a('s_cmp_ge_u32 s2, 256\ns_cbranch_scc1 L_end')
        s.stamp(0)
        a('s_load_dwordx16 s[4:19], s[0:1], 0\ns_load_dwordx8 s[20:27], s[0:1], 64')
        a('v_lshrrev_b32 v2, 6, v0\nv_and_b32 v1, 63, v0\ns_nop 0\nv_readfirstlane_b32 s3, v2')
        a(f's_and_b32 s{sT0}, s2, 7\ns_lshr_b32 s{sT1}, s2, 3')
        a(f's_and_b32 s{sC}, s{sT1}, 3\ns_lshr_b32 s{sR}, s{sT1}, 2\ns_lshl_b32 s{sT2}, s{sT0}, 3\ns_add_u32 s{sR}, s{sR}, s{sT2}')
        a(f's_mul_i32 s{sP}, s{sT1}, 6\ns_add_u32 s{sP}, s{sP}, s{sT0}\ns_sub_u32 s{sP}, s{sP}, 2')
        a(f's_mul_i32 s{sCB}, s{sP}, 171\ns_lshr_b32 s{sCB}, s{sCB}, 9\ns_mul_i32 s{sKT}, s{sCB}, 3\ns_sub_u32 s{sKT}, s{sP}, s{sKT}')
        a(f's_mov_b32 s{sBUD}, {s.budget}')
        a('v_lshrrev_b32 v2, 3, v1\nv_and_b32 v3, 7, v1\nv_lshlrev_b32 v3, 4, v3\nv_mov_b32 v4, 0xfffff000')
        a('s_cmp_lg_u32 s3, 6\ns_cbranch_scc1 L_nopre')
        a(f's_getpc_b64 s[{sT2}:{sT3}]\nL_pc:\ns_sub_u32 s{sT2}, s{sT2}, L_pc-{NAME}\ns_subb_u32 s{sT3}, s{sT3}, 0')
        a(f'v_lshlrev_b32 v5, 7, v1\nglobal_load_dword v254, v5, s[{sT2}:{sT3}]\nv_add_u32 v5, 0x2000, v5')
        a(f'v_min_u32 v5, L_end-{NAME}, v5\nglobal_load_dword v255, v5, s[{sT2}:{sT3}]')
        a('L_nopre:')
        a('s_waitcnt lgkmcnt(0)')
        a(f's_load_dword s{sE1}, s[26:27], {WS_EPOCH}')
        def mk(b,p,n): a(f's_mov_b32 s{b}, s{p}\ns_mov_b32 s{b+1}, s{p+1}\ns_mov_b32 s{b+2}, {n}\ns_mov_b32 s{b+3}, 0x20000')
        mk(S_X,4,2048); mk(S_WQ,10,8*MiB); mk(S_K,6,32*MiB); mk(S_V,8,32*MiB)
        mk(S_G,16,7*MiB); mk(S_U,18,7*MiB); mk(S_WO,12,8*MiB); mk(S_D,20,7*MiB); mk(S_WS,26,WS_SIZE); mk(S_OUT,22,2048)
        a(f's_cmp_lt_u32 s{sT0}, 2\ns_cbranch_scc1 L_A')
        s.gen_P()
        s.gen_A()
        s.gen_opath(); s.gen_hpath(); s.gen_od()
        if s.diag: s.gen_diag()
        a('L_end:\ns_endpgm')
        s.o.append(f'''.section .rodata,"a"
.p2align 6
.amdhsa_kernel {NAME}
  .amdhsa_next_free_vgpr 256
  .amdhsa_next_free_sgpr 102
  .amdhsa_accum_offset 256
  .amdhsa_group_segment_fixed_size 0
  .amdhsa_kernarg_size 96
  .amdhsa_user_sgpr_count 2
  .amdhsa_user_sgpr_kernarg_segment_ptr 1
  .amdhsa_system_sgpr_workgroup_id_x 1
.end_amdhsa_kernel''')
        return '\n'.join(s.o)+'\n'

    def tag_ready(s):
        s.a(f's_waitcnt lgkmcnt(0)\ns_add_u32 s{sE1}, s{sE1}, 1\ns_and_b32 s{sTAG}, s{sE1}, 0xfff')

    V_MASK=8
    V_OQ,V_OG,V_OO=12,13,14
    V_ACC=16
    V_A=32
    V_OD=96
    V_RING=160
    V_TMP=200

    def od_offsets(s):
        a=s.a
        a(f's_lshl_b32 s{sT0}, s{sC}, 9\ns_lshl_b32 s{sT1}, s3, 7\ns_add_u32 s{sT0}, s{sT0}, s{sT1}')
        a(f's_lshl_b32 s{sT2}, s{sR}, 17\ns_add_u32 s{sT2}, s{sT2}, s{sT0}')
        a(f's_mul_i32 s{sT3}, s{sR}, {56*2048}\ns_add_u32 s{sT3}, s{sT3}, s{sT0}')
        a(f'v_lshl_add_u32 v{s.V_OO}, v2, 11, v3')
    def od_load(s,i):
        r=s.V_OD+4*i
        if i<8: return f'buffer_load_dwordx4 {s.v4(r)}, v{s.V_OO}, {s.srd(S_WO)}, s{sT2} offen {s.nt}\ns_add_u32 s{sT2}, s{sT2}, 16384'
        return f'buffer_load_dwordx4 {s.v4(r)}, v{s.V_OO}, {s.srd(S_D)}, s{sT3} offen {s.nt}\ns_add_u32 s{sT3}, s{sT3}, 16384'
    def masks(s):
        a=s.a; m=s.V_MASK
        a(f'v_and_b32 v5, 1, v1\nv_lshlrev_b32 v5, 4, v5\nv_mov_b32 v6, 0xffff\nv_lshlrev_b32 v6, v5, v6')
        a(f'v_bfe_u32 v5, v1, 1, 2')
        for r in range(4):
            a(f'v_cmp_eq_u32 vcc, {r}, v5\ns_nop 1\nv_cndmask_b32 v{m+r}, 0, v6, vcc')

    def gen_P(s):
        a=s.a; D=s.D
        a('s_cmp_ge_u32 s3, 4\ns_cbranch_scc1 L_Pcomm')
        sQ,sGU=4,5
        XL=s.V_A
        xr=s.V_OD
        a(f'v_lshlrev_b32 v5, 5, v1')
        X0=s.V_A+44
        a(f'buffer_load_dwordx4 {s.v4(X0)}, v5, {s.srd(S_X)}, 0 offen\nbuffer_load_dwordx4 {s.v4(X0+4)}, v5, {s.srd(S_X)}, 0 offen offset:16')
        a(f's_mul_i32 s6, s{sKT}, 352\ns_mul_i32 s7, s3, 88\ns_add_u32 s6, s6, s7')
        a(f's_lshl_b32 s7, s{sCB}, 7')
        a(f's_lshl_b32 s{sQ}, s6, 13\ns_add_u32 s{sQ}, s{sQ}, s7')
        a(f's_mul_i32 s{sGU}, s6, 7168\ns_add_u32 s{sGU}, s{sGU}, s7')
        a(f'v_lshl_add_u32 v{s.V_OQ}, v2, 13, v3')
        a(f'v_mul_u32_u24 v{s.V_OG}, 7168, v2\nv_add_u32 v{s.V_OG}, v{s.V_OG}, v3')
        a(f's_cmp_lt_u32 s{sCB}, 56\ns_cselect_b32 s{S_G+2}, {7*MiB}, 0\ns_cselect_b32 s{S_U+2}, {7*MiB}, 0')
        NB=D+1
        assert D+1<=23
        def ring(n): return s.V_RING+4*(n%NB)
        def load(n):
            if n<11: return f'buffer_load_dwordx4 {s.v4(ring(n))}, v{s.V_OQ}, {s.srd(S_WQ)}, s{sQ} offen {s.nt}\ns_add_u32 s{sQ}, s{sQ}, 65536'
            if n<33:
                m=(n-11)&1
                t=f'buffer_load_dwordx4 {s.v4(ring(n))}, v{s.V_OG}, {s.srd(S_U if m else S_G)}, s{sGU} offen {s.nt}'
                if m: t+=f'\ns_add_u32 s{sGU}, s{sGU}, {8*7168}'
                return t
            return s.od_load(n-33)
        for n in range(D): a(load(n))
        s.od_offsets()
        s.masks()
        for i in range(16): a(f'v_mov_b32 v{s.V_ACC+i}, 0')
        F=s.V_A
        a(f'v_lshlrev_b32 v5, 5, v1')
        a(f's_waitcnt vmcnt({D})')
        s.stamp(1)
        a(f'ds_write_b128 v5, {s.v4(X0)} offset:{L_XRAW}\nds_write_b128 v5, {s.v4(X0+4)} offset:{L_XRAW+16}')
        for i in range(8):
            a(f'v_lshlrev_b32 v{F+2*i}, 16, v{X0+i}\nv_and_b32 v{F+2*i+1}, 0xffff0000, v{X0+i}')
        XS=s.V_A+48+4
        a(f'v_add_u32 v6, s6, v2\nv_lshlrev_b32 v6, 1, v6')
        a('s_waitcnt lgkmcnt(0)')
        for i in range(11): a(f'ds_read_u16 v{XS+i}, v6 offset:{L_XRAW+16*i}')
        a(f'v_add_f32 v7, v{F}, v{F+1}')
        for i in range(2,16): a(f'v_add_f32 v7, v7, v{F+i}')
        s.wave_sum(7,8)
        a('s_nop 1\nv_mov_b32 v7, 0x3a800000\nv_mul_f32 v7, s8, v7')
        for i in range(16): a(f'v_sub_f32 v{F+i}, v{F+i}, v7')
        a(f'v_mul_f32 v15, v{F}, v{F}')
        for i in range(1,16): a(f'v_fmac_f32 v15, v{F+i}, v{F+i}')
        s.wave_sum(15,8)
        a('s_nop 1\nv_mov_b32 v15, 0x3a800000\nv_mul_f32 v15, s8, v15')
        a('v_cvt_pk_bf16_f32 v7, 0, v7\nv_cvt_pk_bf16_f32 v15, 0, v15')
        a('v_add_f32 v15, 0x3727c5ac, v15\nv_cvt_pk_bf16_f32 v15, 0, v15\nv_sqrt_f32 v15, v15\ns_nop 0\nv_cvt_pk_bf16_f32 v15, 0, v15\nv_rcp_f32 v15, v15')
        a('s_waitcnt lgkmcnt(0)')
        a(f's_add_u32 s{sE1}, s{sE1}, 1\ns_and_b32 s{sTAG}, s{sE1}, 0xfff')
        for i in range(11): a(f'v_lshlrev_b32 v{XS+i}, 16, v{XS+i}')
        for i in range(11): a(f'v_sub_f32 v{XS+i}, v{XS+i}, v7')
        for i in range(11): a(f'v_cvt_pk_bf16_f32 v{XS+i}, 0, v{XS+i}')
        for i in range(11): a(f'v_mul_f32 v{XS+i}, v{XS+i}, v15')
        for i in range(11): a(f'v_cvt_pk_bf16_f32 v{XS+i}, v{XS+i}, v{XS+i}')
        a(f'v_add_u32 v6, s6, v2')
        for i in range(11):
            a(f'v_cmp_gt_u32 vcc, {1024-8*i}, v6\ns_nop 1\nv_cndmask_b32 v{XS+i}, 0, v{XS+i}, vcc')
        for i in range(11):
            for r in range(4): a(f'v_and_b32 v{s.V_A+4*i+r}, v{XS+i}, v{s.V_MASK+r}')
        s.stamp(2)
        a(f'v_lshlrev_b32 v5, 1, v3\nv_and_b32 v6, 16, v1\nv_add_u32 v5, v5, v6\nv_lshrrev_b32 v6, 5, v1\nv_lshl_add_u32 v5, v6, 8, v5')
        a(f's_lshl_b32 s7, s3, 9\nv_add_u32 v5, s7, v5')
        VALID=0xFF00FF0000FF00FF
        NL=48
        for k in range(33):
            issued=min(NL,k+D)
            a(f's_waitcnt vmcnt({issued-k-1})')
            if k+D<NL: a(load(k+D))
            if k<11: acc=s.V_ACC; ai=k
            else: acc=s.V_ACC+4+4*((k-11)&1); ai=(k-11)>>1
            a(f'v_mfma_f32_16x16x32_bf16 {s.v4(acc)}, {s.v4(s.V_A+4*ai)}, {s.v4(ring(k))}, {s.v4(acc)}')
            if k==10:
                s.stamp(3)
                s.exec(VALID); a('s_nop 6')
                a(f'ds_write_b128 v5, {s.v4(s.V_ACC)} offset:{L_RED}')
                s.exec((1<<64)-1)
                a('s_waitcnt lgkmcnt(0)\ns_barrier')
        s.stamp(4)
        s.exec(VALID); a('s_nop 6')
        a(f'ds_write_b128 v5, {s.v4(s.V_ACC+4)} offset:{L_RED+2048}\nds_write_b128 v5, {s.v4(s.V_ACC+8)} offset:{L_RED+4096}')
        s.exec((1<<64)-1)
        a('s_waitcnt lgkmcnt(0)\ns_barrier')
        for n in range(33+D,NL):
            a(f's_waitcnt vmcnt({D-1})'); a(load(n))
        a('s_branch L_OD')
        a('L_Pcomm:')
        a('s_cmp_ge_u32 s3, 6\ns_cbranch_scc1 L_end')
        a('s_setprio 2')
        s.tag_ready()
        a('s_cmp_eq_u32 s3, 5\ns_cbranch_scc1 L_P5')
        a(f'v_lshlrev_b32 v5, 4, v1')
        a(f's_lshl_b32 s4, s{sKT}, 14\ns_lshl_b32 s5, s{sCB}, 8\ns_add_u32 s4, s4, s5\ns_add_u32 s4, s4, {WS_QP}')
        a('s_barrier')
        s.exec(0xffff)
        s.red8(L_RED,5,16)
        s.tagpack(range(16,20),4)
        a(f'buffer_store_dwordx4 v[16:19], v5, {s.srd(S_WS)}, s4 offen sc1')
        s.stamp(3)
        s.exec((1<<64)-1)
        a('s_barrier')
        a('s_branch L_opath')
        a('L_P5:')
        a(f'v_and_b32 v6, 15, v1\nv_lshlrev_b32 v6, 4, v6\nv_lshrrev_b32 v7, 4, v1\nv_lshl_add_u32 v5, v7, 11, v6')
        a(f'v_mul_u32_u24 v7, {3584*4}, v7\nv_add_u32 v6, v6, v7')
        a(f's_mul_i32 s4, s{sKT}, {2*3584*4}\ns_lshl_b32 s5, s{sCB}, 8\ns_add_u32 s4, s4, s5\ns_add_u32 s4, s4, {WS_GU}')
        a('s_barrier\ns_barrier')
        a(f's_cmp_ge_u32 s{sCB}, 56\ns_cbranch_scc1 L_hpath')
        s.exec(0xffffffff)
        s.red8(L_RED+2048,5,16)
        s.tagpack(range(16,20),4)
        a(f'buffer_store_dwordx4 v[16:19], v6, {s.srd(S_WS)}, s4 offen sc1')
        s.stamp(4)
        s.exec((1<<64)-1)
        a('s_branch L_hpath')

    def red8(s,base,va,dst):
        a=s.a
        for i in range(8): a(f'ds_read_b128 {s.v4(dst+4*i)}, v{va} offset:{base+256*i}')
        for i in range(1,8):
            a(f's_waitcnt lgkmcnt({7-i})')
            a(f'v_pk_add_f32 v[{dst}:{dst+1}], v[{dst}:{dst+1}], v[{dst+4*i}:{dst+4*i+1}]\nv_pk_add_f32 v[{dst+2}:{dst+3}], v[{dst+2}:{dst+3}], v[{dst+4*i+2}:{dst+4*i+3}]')

    def gen_A(s):
        a=s.a
        a('L_A:')
        sG,sS=4,5
        a(f's_lshr_b32 s{sG}, s{sT1}, 4\ns_lshl_b32 s6, s{sT0}, 1\ns_add_u32 s{sG}, s{sG}, s6\ns_and_b32 s{sS}, s{sT1}, 15')
        a(f's_lshl_b32 s6, s{sG}, 23\ns_lshl_b32 s7, s{sS}, 16\ns_add_u32 s6, s6, s7\ns_lshl_b32 s7, s3, 13\ns_add_u32 s6, s6, s7\ns_add_u32 s6, s6, {7*MiB}')
        a('v_lshrrev_b32 v5, 4, v1\nv_and_b32 v6, 15, v1\nv_lshlrev_b32 v7, 8, v5')
        for n in range(4):
            a(f'v_add_u32 v15, {4*n}, v5\nv_xor_b32 v15, v15, v6\nv_lshl_add_u32 v{8+n}, v15, 4, v7')
        for n in range(2):
            a(f'v_add_u32 v15, {4*n}, v5\nv_lshlrev_b32 v15, 1, v15\nv_xor_b32 v15, v15, v6\nv_lshl_add_u32 v{12+n}, v15, 4, v7')
        a(f's_add_u32 s8, s7, {L_K}\ns_add_u32 s9, s6, 4096')
        for h in range(2):
            a(f's_add_u32 m0, s8, {4096*h}\ns_nop 0')
            for n in range(4):
                a(f'buffer_load_dwordx4 v{8+n}, {s.srd(S_K)}, s{6 if h==0 else 9} offen offset:{1024*n} {s.nt} lds')
        for h in range(2):
            a(f's_add_u32 m0, s8, {65536+4096*h}\ns_nop 0')
            for n in range(4):
                a(f'buffer_load_dwordx4 v{12+(n&1)}, {s.srd(S_V)}, s{6 if h==0 else 9} offen offset:{1024*n} {s.nt} lds')
        a(f'v_mov_b32 v15, 0xff800000\nv_and_b32 v16, 7, v1\nv_lshlrev_b32 v16, 2, v16\nds_write_b32 v16, v15 offset:{L_MX}')
        a(f'v_lshlrev_b32 v7, 8, v6\nv_add_u32 v7, s8, v7')
        for st in range(4):
            a(f'v_add_u32 v15, {4*st}, v5\nv_xor_b32 v15, v15, v6\nv_lshl_add_u32 v{8+st}, v15, 4, v7')
        a(f'v_lshrrev_b32 v15, 2, v1\nv_lshlrev_b32 v12, 8, v15\nv_and_b32 v15, 7, v15\nv_xor_b32 v15, s3, v15\nv_lshl_add_u32 v12, v15, 5, v12')
        a(f'v_and_b32 v15, 3, v1\nv_lshl_add_u32 v12, v15, 3, v12\nv_add_u32 v12, {L_V}, v12')
        a(f'v_and_b32 v15, 7, v1\nv_mul_u32_u24 v13, 288, v15\nv_lshl_add_u32 v13, v5, 4, v13')
        a(f'v_lshlrev_b32 v14, 3, v1\ns_lshl_b32 s10, s{sG}, 12\ns_lshl_b32 s11, s3, 9\ns_add_u32 s10, s10, s11\ns_add_u32 s10, s10, {WS_QP}')
        a(f's_add_u32 s11, s10, 16384\ns_add_u32 s12, s10, 32768')
        a(f's_mul_i32 s13, s3, 288\nv_lshlrev_b32 v17, 2, v1\nv_add_u32 v17, s13, v17')
        a(f'v_lshlrev_b32 v18, 4, v1\ns_lshl_b32 s13, s3, 10\nv_add_u32 v19, s13, v18')
        a(f'v_and_b32 v15, 7, v1\nv_lshlrev_b32 v20, 13, v15\nv_lshl_add_u32 v20, v5, 4, v20')
        a(f's_lshl_b32 s14, s{sG}, 16\ns_lshl_b32 s13, s{sS}, 9\ns_add_u32 s14, s14, s13\ns_lshl_b32 s13, s3, 6\ns_add_u32 s14, s14, s13\ns_add_u32 s14, s14, {WS_AP}')
        a(f's_lshl_b32 s15, s{sG}, 4\ns_add_u32 s15, s15, s{sS}\ns_lshl_b32 s15, s15, 7\ns_add_u32 s15, s15, {WS_ML}')
        s.tag_ready()
        KF=32
        QF=64
        VF=160
        PF=192
        SC=80
        a('s_waitcnt vmcnt(8)')
        s.stamp(1)
        for t in range(2):
            for st in range(4): a(f'ds_read_b128 {s.v4(KF+16*t+4*st)}, v{8+st} offset:{4096*t}')
        for i in range(8): a(f'v_mov_b32 v{SC+i}, 0')
        for i in range(8): a(f'v_mov_b32 v{24+i}, 0')
        for i in range(4): a(f'v_mov_b32 v{88+i}, 0x3f803f80')
        a(f's_mov_b32 s16, 0x3db504f3\ns_mov_b32 s17, {hex(LOG2E)}')
        a('s_waitcnt vmcnt(0)')
        s.stamp(2)
        s.poll_begin('Aq')
        for k in range(3): a(f'buffer_load_dwordx2 v[{QF+2*k}:{QF+2*k+1}], v14, {s.srd(S_WS)}, s{10+k} offen sc1')
        a('s_waitcnt vmcnt(0)')
        s.poll_end('Aq',range(QF,QF+6),15)
        s.stamp(3)
        a(f'v_pk_add_f32 v[{QF}:{QF+1}], v[{QF}:{QF+1}], v[{QF+2}:{QF+3}]\nv_pk_add_f32 v[{QF}:{QF+1}], v[{QF}:{QF+1}], v[{QF+4}:{QF+5}]')
        a(f'v_cvt_pk_bf16_f32 v15, v{QF}, v{QF+1}\nds_write_b32 v17, v15 offset:{L_QT}')
        a('s_waitcnt lgkmcnt(0)\ns_barrier')
        s.stamp(4)
        for st in range(4): a(f'ds_read_b128 {s.v4(QF+4*st)}, v13 offset:{L_QT+64*st}')
        for u in range(4):
            for t in range(2): a(f'ds_read_b64_tr_b16 v[{VF+4*u+2*t}:{VF+4*u+2*t+1}], v12 offset:{(32*u+16*t)*256}')
        for st in range(4):
            a(f's_waitcnt lgkmcnt({8+3-st})')
            for t in range(2): a(f'v_mfma_f32_16x16x32_bf16 {s.v4(SC+4*t)}, {s.v4(KF+16*t+4*st)}, {s.v4(QF+4*st)}, {s.v4(SC+4*t)}')
        for u in range(4,8):
            for t in range(2): a(f'ds_read_b64_tr_b16 v[{VF+4*u+2*t}:{VF+4*u+2*t+1}], v12 offset:{(32*u+16*t)*256}')
        for i in range(8): a(f'v_cvt_pk_bf16_f32 v{SC+i}, 0, v{SC+i}')
        for i in range(8): a(f'v_mul_f32 v{SC+i}, s16, v{SC+i}')
        for i in range(8): a(f'v_cvt_pk_bf16_f32 v{SC+i}, 0, v{SC+i}')
        a(f'v_max3_f32 v15, v{SC}, v{SC+1}, v{SC+2}\nv_max3_f32 v21, v{SC+3}, v{SC+4}, v{SC+5}\nv_max3_f32 v15, v15, v{SC+6}, v{SC+7}\nv_max_f32 v15, v15, v21')
        a(f'ds_max_f32 v16, v15 offset:{L_MX}')
        a('s_waitcnt lgkmcnt(0)\ns_barrier')
        a(f'ds_read_b32 v21, v16 offset:{L_MX}\ns_waitcnt lgkmcnt(0)')
        a(f'v_mul_f32 v15, s17, v21')
        for i in range(8): a(f'v_fma_f32 v{SC+i}, v{SC+i}, s17, -v15')
        for i in range(8): a(f'v_exp_f32 v{SC+i}, v{SC+i}')
        a('s_nop 0')
        for i in range(4): a(f'v_cvt_pk_bf16_f32 v{92+i}, v{SC+2*i}, v{SC+2*i+1}')
        a(f'ds_write_b128 v19, v[92:95] offset:{L_PX}')
        a('s_waitcnt lgkmcnt(0)\ns_barrier')
        for u in range(8): a(f'ds_read_b128 {s.v4(PF+4*u)}, v18 offset:{L_PX+1024*u}')
        for u in range(8):
            a(f's_waitcnt lgkmcnt({7-u})')
            a(f'v_mfma_f32_16x16x32_bf16 v[24:27], {s.v4(VF+4*u)}, {s.v4(PF+4*u)}, v[24:27]')
        a('s_cmp_lg_u32 s3, 7\ns_cbranch_scc1 L_Anol')
        for u in range(8): a(f'v_mfma_f32_16x16x32_bf16 v[28:31], v[88:91], {s.v4(PF+4*u)}, v[28:31]')
        a('L_Anol:')
        a('s_nop 7')
        s.tagpack(range(24,28),4)
        s.exec(0x00FF00FF00FF00FF)
        a(f'buffer_store_dwordx4 v[24:27], v20, {s.srd(S_WS)}, s14 offen sc1')
        s.stamp(5)
        a('s_cmp_lg_u32 s3, 7\ns_cbranch_scc1 L_Anoml')
        a('v_mov_b32 v29, v28\nv_mov_b32 v31, v28\nv_mov_b32 v28, v21\nv_mov_b32 v30, v21')
        s.tagpack(range(28,32),4)
        s.exec(0xff)
        a(f'buffer_store_dwordx4 v[28:31], v3, {s.srd(S_WS)}, s15 offen sc1')
        a('L_Anoml:')
        s.exec((1<<64)-1)
        a('s_cmp_eq_u32 s3, 4\ns_cbranch_scc1 L_opath\ns_cmp_eq_u32 s3, 5\ns_cbranch_scc1 L_hpath')
        a('s_cmp_ge_u32 s3, 6\ns_cbranch_scc1 L_fin')
        s.od_offsets()
        for i in range(15): a(s.od_load(i))
        s.masks()
        for i in range(4): a(f'v_mov_b32 v{s.V_ACC+12+i}, 0')
        a('s_branch L_OD')

    def gen_opath(s):
        a=s.a
        a('L_opath:')
        a(f's_lshr_b32 s4, s{sR}, 1\ns_and_b32 s5, s{sR}, 1')
        a(f's_lshl_b32 s6, s4, 13\ns_lshl_b32 s7, s5, 8\ns_add_u32 s6, s6, s7\ns_add_u32 s6, s6, {WS_AP}')
        a(f's_lshr_b32 s7, s4, 3\ns_lshl_b32 s7, s7, 11\ns_and_b32 s8, s4, 7\ns_lshl_b32 s8, s8, 4\ns_add_u32 s7, s7, s8\ns_add_u32 s7, s7, {WS_ML}')
        a('v_lshrrev_b32 v5, 4, v1\nv_and_b32 v6, 15, v1\nv_lshlrev_b32 v7, 4, v6\nv_lshl_add_u32 v8, v5, 11, v7')
        a('v_lshl_add_u32 v9, v5, 2, v6\nv_and_b32 v9, 15, v9\nv_lshlrev_b32 v9, 7, v9')
        a(f's_mov_b32 s17, {hex(LOG2E)}')
        s.stamp(5)
        s.poll_begin('op')
        a(f'buffer_load_dwordx4 v[32:35], v9, {s.srd(S_WS)}, s7 offen sc1')
        for n in range(4): a(f'buffer_load_dwordx4 {s.v4(36+4*n)}, v8, {s.srd(S_WS)}, s6 offen offset:{512*n} sc1')
        a('s_waitcnt vmcnt(0)')
        s.poll_end('op',range(32,52),15)
        s.stamp(6)
        a('v_mov_b32 v10, v32')
        for k in (1,2,4,8): a(f's_nop 1\nv_max_f32_dpp v10, v10, v10 row_ror:{k} row_mask:0xf bank_mask:0xf')
        a('v_sub_f32 v10, v32, v10\nv_mul_f32 v10, s17, v10\nv_exp_f32 v10, v10\ns_nop 0\nv_mul_f32 v11, v10, v33')
        for k in (1,2,4,8): a(f's_nop 1\nv_add_f32_dpp v11, v11, v11 row_ror:{k} row_mask:0xf bank_mask:0xf')
        a('v_rcp_f32 v11, v11\ns_nop 0\nv_mul_f32 v10, v10, v11\ns_nop 1')
        for r in range(4): a(f'v_mul_f32_dpp v{16+r}, v10, v{36+r} row_newbcast:0 row_mask:0xf bank_mask:0xf')
        for n in range(1,4):
            for r in range(4): a(f'v_fmac_f32_dpp v{16+r}, v10, v{36+4*n+r} row_newbcast:{n} row_mask:0xf bank_mask:0xf')
        for sw in ('v_permlane16_swap_b32','v_permlane32_swap_b32'):
            for r in range(4): a(f'v_mov_b32 v{20+r}, v{16+r}')
            a('s_nop 0')
            for r in range(4): a(f'{sw} v{16+r}, v{20+r}')
            for r in range(4): a(f'v_add_f32 v{16+r}, v{16+r}, v{20+r}')
        for r in range(4): a(f'v_cvt_pk_bf16_f32 v{16+r}, v{16+r}, v{16+r}')
        s.exec(0xffff)
        a(f'ds_write_b128 v7, v[16:19] offset:{L_T}')
        a('s_waitcnt lgkmcnt(0)')
        s.stamp(7)
        a('s_barrier')
        a('L_fin:')
        s.finish()

    def gen_hpath(s):
        a=s.a
        a('L_hpath:')
        a(f's_mul_i32 s4, s{sR}, 224\ns_add_u32 s4, s4, {WS_GU}')
        for k in range(1,6): a(f's_add_u32 s{4+k}, s4, {k*3584*4}')
        a('v_lshlrev_b32 v5, 2, v1')
        s.exec((1<<56)-1)
        s.stamp(5)
        s.poll_begin('hp')
        for k in range(6): a(f'buffer_load_dword v{16+k}, v5, {s.srd(S_WS)}, s{4+k} offen sc1')
        a('s_waitcnt vmcnt(0)')
        s.poll_end('hp',range(16,22),15)
        s.stamp(6)
        a('v_add_f32 v16, v16, v18\nv_add_f32 v17, v17, v19\nv_add_f32 v16, v16, v20\nv_add_f32 v17, v17, v21')
        a('v_cvt_pk_bf16_f32 v16, 0, v16\nv_cvt_pk_bf16_f32 v17, 0, v17')
        import struct
        f=lambda x: hex(struct.unpack('<I',struct.pack('<f',x))[0])
        c1=-2*1.4426950408889634*0.7978845608028654; c2=c1*0.044715
        a(f'v_mul_f32 v18, v16, v16\nv_mov_b32 v19, {f(c1)}\nv_fmac_f32 v19, {f(c2)}, v18\nv_mul_f32 v19, v19, v16')
        a('v_exp_f32 v19, v19\ns_nop 0\nv_add_f32 v19, 1.0, v19\nv_rcp_f32 v19, v19\ns_nop 0\nv_mul_f32 v19, v19, v16')
        a('v_cvt_pk_bf16_f32 v19, 0, v19\nv_mul_f32 v19, v19, v17\nv_cvt_pk_bf16_f32 v19, v19, v19')
        a(f'ds_write_b32 v5, v19 offset:{L_T+256}')
        a('s_waitcnt lgkmcnt(0)')
        s.stamp(7)
        a('s_barrier')
        s.exec((1<<64)-1)
        a(f's_and_b32 s4, s2, 7\ns_cmp_lt_u32 s4, 2\ns_cbranch_scc1 L_fin\ns_cmp_lt_u32 s{sP}, 160\ns_cbranch_scc1 L_fin')
        a(f's_sub_u32 s4, s{sP}, 160')
        a(f's_lshl_b32 s5, s4, 6')
        a(f's_lshl_b32 s6, s4, 7\ns_add_u32 s6, s6, {WS_FP}')
        for n in range(1,8): a(f's_add_u32 s{6+n}, s6, {n*32768}')
        a('v_lshl_add_u32 v5, v2, 12, v3\nv_lshrrev_b32 v6, 1, v3')
        a(f'buffer_load_dwordx2 v[8:9], v6, {s.srd(S_X)}, s5 offen')
        s.poll_begin('rd')
        for n in range(8): a(f'buffer_load_dwordx4 {s.v4(16+4*n)}, v5, {s.srd(S_WS)}, s{6+n} offen sc1')
        a('s_waitcnt vmcnt(0)')
        s.poll_end('rd',range(16,48),15)
        s.stamp(8)
        for st in (16,8,4):
            for b in range(16,16+st,2): a(f'v_pk_add_f32 v[{b}:{b+1}], v[{b}:{b+1}], v[{b+st}:{b+st+1}]')
        a('s_nop 1')
        for r in range(4): a(f'v_add_f32_dpp v{16+r}, v{16+r}, v{16+r} row_ror:8 row_mask:0xf bank_mask:0xf')
        for sw in ('v_permlane16_swap_b32','v_permlane32_swap_b32'):
            for r in range(4): a(f'v_mov_b32 v{20+r}, v{16+r}')
            a('s_nop 0')
            for r in range(4): a(f'{sw} v{16+r}, v{20+r}')
            for r in range(4): a(f'v_add_f32 v{16+r}, v{16+r}, v{20+r}')
        a('v_lshlrev_b32 v10, 16, v8\nv_and_b32 v11, 0xffff0000, v8\nv_lshlrev_b32 v12, 16, v9\nv_and_b32 v13, 0xffff0000, v9')
        for r in range(4): a(f'v_add_f32 v{16+r}, v{16+r}, v{10+r}')
        a('v_cvt_pk_bf16_f32 v16, v16, v17\nv_cvt_pk_bf16_f32 v17, v18, v19')
        s.exec(0xff)
        a(f'buffer_store_dwordx2 v[16:17], v6, {s.srd(S_OUT)}, s5 offen')
        a('s_cmp_lg_u32 s4, 0\ns_cbranch_scc1 L_rdone')
        s.exec(1)
        a(f'v_mov_b32 v18, s{sE1}\nv_mov_b32 v19, {WS_EPOCH}\nbuffer_store_dword v18, v19, {s.srd(S_WS)}, 0 offen sc1')
        a('L_rdone:')
        s.stamp(9)
        s.finish()

    def gen_od(s):
        a=s.a
        a('L_OD:')
        ACC=s.V_ACC+12
        TV=s.V_RING
        a(f'v_lshlrev_b32 v5, 2, v2')
        a(f'v_lshlrev_b32 v6, 1, v3\nv_and_b32 v7, 16, v1\nv_add_u32 v6, v6, v7')
        a(f's_lshl_b32 s4, s{sR}, 12\ns_lshl_b32 s5, s{sC}, 10\ns_add_u32 s4, s4, s5\ns_lshl_b32 s5, s3, 8\ns_add_u32 s4, s4, s5\ns_add_u32 s4, s4, {WS_FP}')
        a(f'v_add_u32 v5, {L_T}, v5')
        if s.diag:
            s.stamp(5); a('s_waitcnt vmcnt(0)'); s.stamp(6)
        a('s_barrier')
        s.stamp(7)
        for i in range(8): a(f'ds_read2_b32 v[{TV+2*i}:{TV+2*i+1}], v5 offset0:{16*i} offset1:{16*i+8}')
        for i in range(15):
            if i%2==0: a(f's_waitcnt lgkmcnt({7-i//2})')
            for r in range(4): a(f'v_and_b32 v{s.V_A+4*i+r}, v{TV+i}, v{s.V_MASK+r}')
            if i>=1:
                a(f's_waitcnt vmcnt({15-i})')
                a(f'v_mfma_f32_16x16x32_bf16 {s.v4(ACC)}, {s.v4(s.V_A+4*(i-1))}, {s.v4(s.V_OD+4*(i-1))}, {s.v4(ACC)}')
        a('s_waitcnt vmcnt(0)\ns_nop 0')
        a(f'v_mfma_f32_16x16x32_bf16 {s.v4(ACC)}, {s.v4(s.V_A+56)}, {s.v4(s.V_OD+56)}, {s.v4(ACC)}')
        a('s_nop 7')
        for r in range(4): a(f'v_mov_b32 v{16+r}, v{ACC+r}')
        a('s_nop 0')
        for r in range(4): a(f'v_permlane32_swap_b32 v{ACC+r}, v{16+r}')
        a('s_nop 0')
        for r in range(4): a(f'v_add_f32_dpp v{ACC+r}, v{16+r}, v{ACC+r} row_shl:8 row_mask:0xf bank_mask:0xf bound_ctrl:0')
        s.tagpack(range(ACC,ACC+4),4)
        s.exec(0x00FF00FF)
        a(f'buffer_store_dwordx4 {s.v4(ACC)}, v6, {s.srd(S_WS)}, s4 offen sc1')
        s.stamp(8)
        s.finish()

    def gen_diag(s):
        a=s.a
        a('L_diag:')
        a('s_waitcnt vmcnt(0)\ns_memrealtime s[100:101]\ns_waitcnt lgkmcnt(0)')
        a(f's_lshl_b32 s4, s2, 3\ns_add_u32 s4, s4, s3\ns_lshl_b32 s4, s4, 6\ns_add_u32 s4, s4, {WS_DIAG}')
        a('s_getreg_b32 s5, hwreg(HW_REG_XCC_ID)')
        a('s_mov_b64 exec, 1\nv_mov_b32 v5, 0')
        vals=[f's{sSTAMP+2*i}' for i in range(10)]+['s100','s5',f's{sBUD}']
        for i,x in enumerate(vals): a(f'v_mov_b32 v6, {x}\nbuffer_store_dword v6, v5, {s.srd(S_WS)}, s4 offen offset:{4*i}')
        a('s_endpgm')

if __name__=='__main__':
    p=argparse.ArgumentParser(); p.add_argument('-o'); p.add_argument('-D',type=int,default=8); p.add_argument('--diag',action='store_true')
    p.add_argument('--nt',default='nt'); p.add_argument('--sleep',type=int,default=1)
    x=p.parse_args()
    open(x.o,'w').write(G(D=x.D,diag=x.diag,ntw=x.nt,sleep=x.sleep).gen())
```

```python
import sys
N='parallel_sum__sliding_block_cached__glu_gated_geglu__decode_kernel'
def probe(w,idx,sel,mult,op='max'):
    o=[]
    a=o.append
    a('''
.text
.globl probe_kernel
.p2align 8
.type probe_kernel,@function
probe_kernel:
  s_cmp_lg_u32 s2, 0
  s_cbranch_scc1 L_pdone
  s_memrealtime s[8:9]
  s_load_dwordx2 s[4:5], s[0:1], 88
  s_waitcnt lgkmcnt(0)
  s_mov_b32 s6, 0x200000
  s_mov_b32 s7, 0x20000
  v_lshlrev_b32 v1, 9, v0
  v_add_u32 v1, 0x100000, v1''')
    a(f'  buffer_load_dword v2, v1, s[4:7], 0 offen')
    a(f'  buffer_load_dword v3, v1, s[4:7], 0 offen offset:{w*64+idx*4}')
    a('  v_and_b32 v4, 7, v0\n  s_waitcnt vmcnt(0)')
    a('  v_sub_u32 v2, s8, v2\n  v_sub_u32 v3, s8, v3')
    if sel=='A': a('  v_cmp_gt_u32 vcc, 2, v4')
    elif sel=='P': a('  v_cmp_le_u32 vcc, 2, v4')
    else:
        a('''  v_lshrrev_b32 v5, 3, v0
  v_mul_u32_u24 v5, 6, v5
  v_add_u32 v5, v5, v4
  v_add_u32 v5, -2, v5
  v_mul_u32_u24 v6, 171, v5
  v_lshrrev_b32 v6, 9, v6
  v_and_b32 v7, 3, v6
  v_cmp_ne_u32 s[10:11], 3, v7
  v_cmp_le_u32 s[12:13], 2, v4
  v_cmp_gt_u32 vcc, 12, v6
  s_and_b64 vcc, vcc, s[10:11]
  s_and_b64 vcc, vcc, s[12:13]''')
    fill='-1' if op=='max' else '0'
    a(f'  s_nop 1\n  v_cndmask_b32 v3, {fill}, v3, vcc')
    a('  v_mov_b32 v8, 0\n  v_mov_b32 v9, 0\n  v_mov_b32 v10, %s\n  ds_write_b32 v8, v9\n  ds_write_b32 v8, v10 offset:4\n  s_waitcnt lgkmcnt(0)\n  s_barrier'%fill)
    a('  ds_max_u32 v8, v2\n  %s v8, v3 offset:4\n  s_waitcnt lgkmcnt(0)\n  s_barrier'%('ds_min_u32' if op=='max' else 'ds_max_u32'))
    a('  ds_read_b64 v[10:11], v8\n  s_waitcnt lgkmcnt(0)\n  v_sub_u32 v10, v10, v11\n  s_nop 0\n  v_readfirstlane_b32 s7, v10')
    a(f'''  s_min_u32 s7, s7, 5000
  s_mul_i32 s7, s7, {mult}
  s_add_u32 s7, s7, 300
L_spin:
  s_memrealtime s[10:11]
  s_waitcnt lgkmcnt(0)
  s_sub_u32 s12, s10, s8
  s_cmp_lt_u32 s12, s7
  s_cbranch_scc1 L_spin
L_pdone:
  s_endpgm
.section .rodata,"a"
.p2align 6
.amdhsa_kernel probe_kernel
  .amdhsa_next_free_vgpr 16
  .amdhsa_next_free_sgpr 32
  .amdhsa_accum_offset 16
  .amdhsa_group_segment_fixed_size 0
  .amdhsa_kernarg_size 96
  .amdhsa_user_sgpr_count 2
  .amdhsa_user_sgpr_kernarg_segment_ptr 1
  .amdhsa_system_sgpr_workgroup_id_x 1
.end_amdhsa_kernel
''')
    return '\n'.join(o)
src,out,w,idx,sel,mult,op=sys.argv[1:8]
s=open(src).read(); body=s.split('\n',1)[1]
m=f'; @launch kernel={N} grid=(256,1,1) block=(512,1,1) lds=147456\n; @launch kernel=probe_kernel grid=(1,1,1) block=(256,1,1) lds=64\n'
open(out,'w').write(m+body+probe(int(w),int(idx),sel,int(mult),op))
```

```python
import sys
N='parallel_sum__sliding_block_cached__glu_gated_geglu__decode_kernel'
def probe(w,idx,sel,mult,op='max'):
    o=[]
    a=o.append
    a('''
.text
.globl probe_kernel
.p2align 8
.type probe_kernel,@function
probe_kernel:
  s_cmp_lg_u32 s2, 0
  s_cbranch_scc1 L_pdone
  s_memrealtime s[8:9]
  s_load_dwordx2 s[4:5], s[0:1], 88
  s_waitcnt lgkmcnt(0)
  s_mov_b32 s6, 0x200000
  s_mov_b32 s7, 0x20000
  v_lshlrev_b32 v1, 9, v0
  v_add_u32 v1, 0x100000, v1''')
    a(f'  buffer_load_dword v2, v1, s[4:7], 0 offen')
    a(f'  buffer_load_dword v3, v1, s[4:7], 0 offen offset:{w*64+idx*4}')
    a('  v_and_b32 v4, 24, v0\n  s_waitcnt vmcnt(0)')
    a('  v_sub_u32 v2, s8, v2\n  v_sub_u32 v3, s8, v3')
    if sel=='A': a('  v_cmp_eq_u32 vcc, 0, v4')
    elif sel=='P': a('  v_cmp_ne_u32 vcc, 0, v4')
    else:
        a('''  v_lshrrev_b32 v5, 3, v0
  v_mul_u32_u24 v5, 6, v5
  v_add_u32 v5, v5, v4
  v_add_u32 v5, -2, v5
  v_mul_u32_u24 v6, 171, v5
  v_lshrrev_b32 v6, 9, v6
  v_and_b32 v7, 3, v6
  v_cmp_ne_u32 s[10:11], 3, v7
  v_cmp_le_u32 s[12:13], 2, v4
  v_cmp_gt_u32 vcc, 12, v6
  s_and_b64 vcc, vcc, s[10:11]
  s_and_b64 vcc, vcc, s[12:13]''')
    fill='-1' if op=='max' else '0'
    a(f'  s_nop 1\n  v_cndmask_b32 v3, {fill}, v3, vcc')
    a('  v_mov_b32 v8, 0\n  v_mov_b32 v9, 0\n  v_mov_b32 v10, %s\n  ds_write_b32 v8, v9\n  ds_write_b32 v8, v10 offset:4\n  s_waitcnt lgkmcnt(0)\n  s_barrier'%fill)
    a('  ds_max_u32 v8, v2\n  %s v8, v3 offset:4\n  s_waitcnt lgkmcnt(0)\n  s_barrier'%('ds_min_u32' if op=='max' else 'ds_max_u32'))
    a('  ds_read_b64 v[10:11], v8\n  s_waitcnt lgkmcnt(0)\n  v_sub_u32 v10, v10, v11\n  s_nop 0\n  v_readfirstlane_b32 s7, v10')
    a(f'''  s_min_u32 s7, s7, 5000
  s_mul_i32 s7, s7, {mult}
  s_add_u32 s7, s7, 300
L_spin:
  s_memrealtime s[10:11]
  s_waitcnt lgkmcnt(0)
  s_sub_u32 s12, s10, s8
  s_cmp_lt_u32 s12, s7
  s_cbranch_scc1 L_spin
L_pdone:
  s_endpgm
.section .rodata,"a"
.p2align 6
.amdhsa_kernel probe_kernel
  .amdhsa_next_free_vgpr 16
  .amdhsa_next_free_sgpr 32
  .amdhsa_accum_offset 16
  .amdhsa_group_segment_fixed_size 0
  .amdhsa_kernarg_size 96
  .amdhsa_user_sgpr_count 2
  .amdhsa_user_sgpr_kernarg_segment_ptr 1
  .amdhsa_system_sgpr_workgroup_id_x 1
.end_amdhsa_kernel
''')
    return '\n'.join(o)
src,out,w,idx,sel,mult,op=sys.argv[1:8]
s=open(src).read(); body=s.split('\n',1)[1]
m=f'; @launch kernel={N} grid=(256,1,1) block=(512,1,1) lds=147456\n; @launch kernel=probe_kernel grid=(1,1,1) block=(256,1,1) lds=64\n'
open(out,'w').write(m+body+probe(int(w),int(idx),sel,int(mult),op))
```
